```python
import torch

def _softmax(x, axis=-1):
    return torch.softmax(x, dim=axis)

def _gelu(x):
    return torch.nn.functional.gelu(x, approximate='tanh')

def _silu(x):
    return torch.nn.functional.silu(x)

def _sigmoid(x):
    return torch.sigmoid(x)

def _layernorm(x, axis=-1, eps=1e-05):
    m = x.mean(dim=axis, keepdim=True)
    v = x.var(dim=axis, keepdim=True, unbiased=False)
    return (x - m) / torch.sqrt(v + eps)

def _scatter_add(tgt, idx, src, axis=0):
    return tgt.clone().index_add_(axis, idx, src)

def _segment_sum(src, seg, n):
    out = torch.zeros((n,) + src.shape[1:], dtype=src.dtype)
    return out.index_add_(0, seg, src)

def _pad(x, pw):
    flat = tuple((v for pair in reversed(pw) for v in pair))
    return torch.nn.functional.pad(x, flat)
kernel_name = 'adaLN_cond__gqa_block_cached__glu_gated_geglu__decode'

def setup_inputs():

    _w = lambda a: (lambda t: t.to(torch.bfloat16) if t.is_floating_point() else t)(torch.as_tensor(a))

    def _A_setup():
        B, Sq, D = (4, 1, 512)
        Hq, Hkv, Sk, Dh = (32, 8, 8192, 128)
        assert Hq % Hkv == 0, (Hq, Hkv)
        return {'x': _w((lambda *s: torch.randn(*s, dtype=torch.bfloat16) * 0.05)(B, Sq, D)), 'k_cache': _w((lambda *s: torch.randn(*s, dtype=torch.bfloat16) * 0.8)(B, Hkv, Sk, Dh)), 'v_cache': _w((lambda *s: torch.randn(*s, dtype=torch.bfloat16) * 3.2)(B, Hkv, Sk, Dh)), 'wq': _w((lambda *s: torch.randn(*s, dtype=torch.bfloat16) * 0.8)(D, Hq * Dh) * D ** (-0.5)), 'wo': _w((lambda *s: torch.randn(*s, dtype=torch.bfloat16) * 3.2)(Hq * Dh, D) * (Hq * Dh) ** (-0.5))}
    _A_in = _A_setup()

    def _B_setup():
        B, S, Dm, Df = (4, 1, 512, 1792)
        return {'x': _w((lambda *s: torch.randn(*s, dtype=torch.bfloat16) * 0.05)(B, S, Dm)), 'w_gate': _w((lambda *s: torch.randn(*s, dtype=torch.bfloat16) * 3.2)(Dm, Df) * Dm ** (-0.5)), 'w_up': _w((lambda *s: torch.randn(*s, dtype=torch.bfloat16) * 3.2)(Dm, Df) * Dm ** (-0.5)), 'w_down': _w((lambda *s: torch.randn(*s, dtype=torch.bfloat16) * 3.2)(Df, Dm) * Df ** (-0.5))}
    _B_in = _B_setup()
    return {'A_x': _A_in['x'], 'A_k_cache': _A_in['k_cache'], 'A_v_cache': _A_in['v_cache'], 'A_wq': _A_in['wq'], 'A_wo': _A_in['wo'], 'B_x': _B_in['x'], 'B_w_gate': _B_in['w_gate'], 'B_w_up': _B_in['w_up'], 'B_w_down': _B_in['w_down'], 'c': _w((lambda *s: torch.randn(*s, dtype=torch.bfloat16) * 0.1)(4, 512) * 8.0), 'w_mod': _w((lambda *s: torch.randn(*s, dtype=torch.bfloat16) * 0.1)(512, 6 * 512) * 512 ** (-0.5) * 8.0)}

def reference(A_x, A_k_cache, A_v_cache, A_wq, A_wo, B_x, B_w_gate, B_w_up, B_w_down, c, w_mod):

    def _A_ref(x, k_cache, v_cache, wq, wo):
        B, Sq, D = x.shape
        Hq, Dh = (32, 128)
        Hkv = k_cache.shape[1]
        rep = Hq // Hkv
        q = (lambda x, *d: x.permute(*d))((x @ wq).reshape(B, Sq, Hq, Dh), 0, 2, 1, 3)
        k = (lambda x, n, axis: torch.repeat_interleave(x, n, dim=axis))(k_cache, rep, axis=1)
        v = (lambda x, n, axis: torch.repeat_interleave(x, n, dim=axis))(v_cache, rep, axis=1)
        scores = torch.einsum('bhqd,bhkd->bhqk', q, k) * Dh ** (-0.5)
        p = _softmax(scores, axis=-1)
        o = torch.einsum('bhqk,bhkd->bhqd', p, v)
        return (lambda x, *d: x.permute(*d))(o, 0, 2, 1, 3).reshape(B, Sq, Hq * Dh) @ wo

    def _B_ref(x, w_gate, w_up, w_down):
        g = torch.einsum('bsd,df->bsf', x, w_gate)
        u = torch.einsum('bsd,df->bsf', x, w_up)
        h = _gelu(g) * u
        return torch.einsum('bsf,fd->bsd', h, w_down)
    x = A_x
    mod = (_silu(c) @ w_mod).reshape(c.shape[0], 6, 1, -1)
    sa, ca, ga, sb, cb, gb = (mod[:, 0].clone(), mod[:, 1].clone(), mod[:, 2].clone(), mod[:, 3].clone(), mod[:, 4].clone(), mod[:, 5].clone())
    h = _layernorm(x, axis=-1) * (1 + ca) + sa
    x = x + ga * _A_ref(h, A_k_cache, A_v_cache, A_wq, A_wo)
    h = _layernorm(x, axis=-1) * (1 + cb) + sb
    x = x + gb * _B_ref(h, B_w_gate, B_w_up, B_w_down)
    return x
```

```python
import re

TRANS = ("v_exp_f32", "v_log_f32", "v_rcp_f32", "v_rsq_f32", "v_sqrt_f32", "v_sin_f32", "v_cos_f32")


def split_ops(s):
    out, depth, cur = [], 0, ""
    for ch in s:
        if ch in "[(":
            depth += 1
        if ch in "])":
            depth -= 1
        if ch == "," and depth == 0:
            out.append(cur.strip())
            cur = ""
        else:
            cur += ch
    if cur.strip():
        out.append(cur.strip())
    return out


def regs_of(op):
    op = op.strip()
    tok = op.split()[0] if op else ""
    tok = tok.lstrip("-")
    if tok.startswith("abs(") or tok.startswith("|"):
        tok = tok.replace("abs(", "").replace(")", "").replace("|", "")
    m = re.fullmatch(r"([vs])(\d+)", tok)
    if m:
        return {(m.group(1), int(m.group(2)))}
    m = re.fullmatch(r"([vs])\[(\d+):(\d+)\]", tok)
    if m:
        return {(m.group(1), i) for i in range(int(m.group(2)), int(m.group(3)) + 1)}
    if tok in ("vcc", "vcc_lo", "vcc_hi"):
        return {("x", "vcc")}
    if tok in ("exec", "exec_lo", "exec_hi"):
        return {("x", "exec")}
    if tok == "m0":
        return {("x", "m0")}
    return set()


class Ins:
    def __init__(self, text):
        self.text = text
        t = text.split(";")[0].strip()
        self.label = None
        self.kind = "other"
        self.defs, self.uses = set(), set()
        self.A = self.B = self.C = set()
        self.ws = 1
        self.mn = ""
        self.dpp = False
        self.target = None
        if not t:
            self.kind = "empty"
            self.ws = 0
            return
        if t.endswith(":"):
            self.label = t[:-1]
            self.kind = "label"
            self.ws = 0
            return
        if t.startswith("."):
            self.kind = "dir"
            self.ws = 0
            return
        parts = t.split(None, 1)
        mn = self.mn = parts[0]
        ops = split_ops(parts[1]) if len(parts) > 1 else []
        R = [regs_of(o) for o in ops]
        allr = set().union(*R) if R else set()
        if mn == "s_nop":
            self.ws = int(ops[0], 0) + 1
        elif mn in ("s_branch",) or mn.startswith("s_cbranch"):
            self.kind = "branch"
            self.target = ops[0]
        elif mn.startswith("v_mfma"):
            self.kind = "mfma"
            self.defs = R[0]
            self.A, self.B, self.C = R[1], R[2], R[3]
            self.uses = R[1] | R[2] | R[3]
        elif mn.startswith("v_"):
            self.kind = "valu"
            self.dpp = "_dpp" in mn or "row_" in t or "quad_perm" in t
            if mn.startswith("v_permlane"):
                self.defs = R[0] | R[1]
                self.uses = R[0] | R[1]
            elif mn.startswith(("v_add_co", "v_sub_co", "v_addc_co", "v_subb_co")):
                self.defs = R[0] | R[1]
                self.uses = set().union(*R[2:])
            else:
                self.defs = R[0]
                self.uses = set().union(*R[1:]) if len(R) > 1 else set()
                if mn.startswith(("v_fmac", "v_dot2c")) or self.dpp or mn.startswith("v_writelane"):
                    self.uses |= R[0]
        elif mn.startswith("ds_"):
            self.kind = "ds"
            if mn.startswith(("ds_read", "ds_bpermute", "ds_permute", "ds_swizzle")):
                self.defs = R[0]
                self.uses = set().union(*R[1:])
            else:
                self.uses = allr
        elif mn.startswith(("buffer_", "global_")):
            self.kind = "vmem"
            self.lds = bool(re.search(r"\blds\b", t))
            if "load" in mn and not self.lds:
                self.defs = R[0]
                self.uses = set().union(*R[1:])
            else:
                self.uses = allr
            self.wide_store = "store" in mn and mn.endswith(("x3", "x4"))
            self.data = set()
            if self.wide_store:
                self.data = R[0] if mn.startswith("buffer_") else R[1]
        elif mn.startswith(("s_load", "s_memrealtime", "s_memtime")):
            self.kind = "smem"
            self.defs = R[0]
            self.uses = set().union(*R[1:]) if len(R) > 1 else set()
        elif mn.startswith("s_"):
            self.kind = "salu"
            if mn.startswith(("s_cmp", "s_waitcnt", "s_barrier", "s_endpgm", "s_setprio", "s_bitcmp")):
                self.uses = allr
            else:
                self.defs = R[0] if R else set()
                self.uses = set().union(*R[1:]) if len(R) > 1 else set()
                if "saveexec" in mn:
                    self.defs |= {("x", "exec")}


def need(p, c):
    n = 0
    pv = {r for r in p.defs if r[0] == "v"}
    ps = {r for r in p.defs if r[0] != "v"}
    if p.kind == "valu":
        if c.kind == "mfma" and pv & c.uses:
            n = max(n, 2)
        if c.kind == "valu":
            if c.dpp and pv & c.uses:
                n = max(n, 2)
            if c.mn.startswith("v_permlane") and pv & c.uses:
                n = max(n, 2)
            if c.mn.startswith(("v_readlane", "v_readfirstlane")) and pv & c.uses:
                n = max(n, 1)
            if p.mn.startswith(TRANS) and pv & c.uses:
                n = max(n, 1)
            if ps & c.uses:
                n = max(n, 4 if c.mn.startswith(("v_readlane", "v_writelane")) else 2)
        if c.kind == "vmem" and ps & c.uses:
            n = max(n, 5)
        if c.kind in ("salu", "smem") and ps & c.uses:
            n = max(n, 1)
        if c.kind == "mfma" and ("x", "exec") in ps:
            n = max(n, 4)
    if p.kind == "mfma":
        if c.kind == "valu" and pv & (c.uses | c.defs):
            n = max(n, 8)
        if c.kind in ("ds", "vmem") and pv & (c.uses | c.defs):
            n = max(n, 8)
        if c.kind == "mfma":
            if pv & (c.A | c.B):
                n = max(n, 8)
            if pv & c.C and pv != c.C:
                n = max(n, 6)
            if pv & c.defs and pv != c.C:
                n = max(n, 6)
        if c.kind == "valu" and p.C & c.defs:
            n = max(n, 3)
    if p.kind == "salu" and ("x", "m0") in ps and c.kind == "vmem" and getattr(c, "lds", False):
        n = max(n, 1)
    if p.kind == "vmem" and getattr(p, "wide_store", False):
        if c.kind == "valu" and p.data & c.defs:
            n = max(n, 2)
        elif c.kind in ("vmem", "ds", "mfma") and p.data & c.defs:
            n = max(n, 1)
    return n


WINDOW = 10


def fix_hazards(lines):
    ins = [Ins(l) for l in lines]
    out = []
    fwd = {}
    pos = {}
    CHK = ("valu", "mfma", "vmem", "ds", "salu", "smem")

    def back(start, d0, c, seen):
        best = 0
        i, d = start, d0
        while i >= 0 and d < WINDOW:
            if (i, d) in seen:
                break
            seen.add((i, d))
            x = out[i]
            if x.kind == "label":
                for b in fwd.get(x.label, []):
                    j = pos[id(b)]
                    best = max(best, back(j - 1, d + 1, c, seen))
            elif x.ws:
                if x.mn in ("s_branch", "s_endpgm"):
                    break
                best = max(best, need(x, c) - d)
                d += x.ws
            i -= 1
        return best

    labels_seen = {}
    for x in ins:
        if x.kind in CHK:
            k = back(len(out) - 1, 0, x, set())
            if k > 0:
                out.append(Ins(f"s_nop {k-1}"))
        if x.kind == "branch":
            if x.target in labels_seen:
                li = labels_seen[x.target]
                d, extra = 1, 0
                for y in out[li + 1:]:
                    if d >= WINDOW:
                        break
                    if y.kind in CHK:
                        extra = max(extra, back(len(out) - 1, d, y, set()))
                    d += y.ws
                    if y.mn in ("s_branch", "s_endpgm"):
                        break
                if extra > 0:
                    out.append(Ins(f"s_nop {extra-1}"))
            else:
                fwd.setdefault(x.target, []).append(x)
        if x.kind == "label":
            labels_seen[x.label] = len(out)
        pos[id(x)] = len(out)
        out.append(x)
    return [x.text for x in out]


class Asm:
    def __init__(self):
        self.L = []

    def __call__(self, s):
        for line in s.split("\n"):
            line = line.strip()
            if line:
                self.L.append(line)

    def text(self):
        body = fix_hazards(self.L)
        return "\n".join(l if (l.endswith(":") or l.startswith(".")) else "  " + l for l in body) + "\n"
```

```python
import sys
sys.path.insert(0, "work")
from asmlib import Asm
import struct

KN = "adaLN_cond__gqa_block_cached__glu_gated_geglu__decode_kernel"

EPOCH, READY, MOD, QP, OP, WP, DP, STAMP = 0, 0x1000, 0x2000, 0x10000, 0x50000, 0xE0000, 0x100000, 0x200000
OREC = 2176
QL = 131072
OL = QL + 1024
STL = OL + 10240
SCR = STL + 128
REDW = SCR + 8192
REDG = REDW + 2048
LNS = REDG + 2048
H2L = LNS + 64
LDS_END = H2L + 1024


def f2u(x):
    return struct.unpack("<I", struct.pack("<f", x))[0]


LOG2E = 1.4426950408889634
SCALE = 128 ** -0.5

DEF = dict(depth=16, NV=5, gran=2048, stg=69632, semul=True, stamps=False, kvpol="nt", wpol="nt",
           tailpol="", order=None, spin=400000, prio=True)


def vr(a, n=1):
    return f"v{a}" if n == 1 else f"v[{a}:{a+n-1}]"


def sr(a, n=1):
    return f"s{a}" if n == 1 else f"s[{a}:{a+n-1}]"


def hexs(x):
    return f"0x{x & 0xffffffff:08x}"


def gen(**kw):
    P = dict(DEF)
    P.update(kw)
    a = Asm()
    uid = [0]

    def lab(p):
        uid[0] += 1
        return f"L_{p}_{uid[0]}"

    nstamp = [0]

    def stamp(i):
        if P["stamps"]:
            a(f"s_memrealtime {sr(64+2*i,2)}")

    def stamp_init():
        if P["stamps"]:
            for i in range(1, 15):
                a(f"s_mov_b64 {sr(64+2*i,2)}, 0")

    def stamp_store(ws_lo):
        if not P["stamps"]:
            return
        a("s_waitcnt lgkmcnt(0)")
        a("s_mov_b64 exec, -1")
        a("v_mov_b32 v2, 0")
        for i in range(15):
            a(f"v_mov_b32 v3, s{64+2*i}")
            a(f"v_cmp_eq_u32 vcc, {i}, v0")
            a("v_cndmask_b32 v2, v2, v3, vcc")
        a("s_lshl_b32 s96, s2, 3\ns_add_u32 s96, s96, s3\ns_lshl_b32 s96, s96, 6")
        a(f"s_add_u32 s96, s96, {STAMP}")
        a("v_lshl_add_u32 v3, v0, 2, s96")
        a("s_mov_b64 exec, 0xffff")
        a(f"global_store_dword v3, v2, {sr(ws_lo,2)}")

    def srd(d, lo, size):
        a(f"s_mov_b32 s{d}, s{lo}\ns_and_b32 s{d+1}, s{lo+1}, 0xffff\ns_mov_b32 s{d+2}, {hexs(size)}\ns_mov_b32 s{d+3}, 0x20000")

    def xlane(op, x, t, which):
        a(f"v_mov_b32 {vr(t)}, {vr(x)}")
        a(f"v_permlane{which}_swap_b32 {vr(x)}, {vr(t)}")
        a(f"{op} {vr(x)}, {vr(x)}, {vr(t)}")

    def xlane_multi(op, xs, ts, which):
        for x, t in zip(xs, ts):
            a(f"v_mov_b32 {vr(t)}, {vr(x)}")
        for x, t in zip(xs, ts):
            a(f"v_permlane{which}_swap_b32 {vr(x)}, {vr(t)}")
        for x, t in zip(xs, ts):
            a(f"{op} {vr(x)}, {vr(x)}, {vr(t)}")

    def dpp_add(xs, ctl):
        for x in xs:
            a(f"v_add_f32_dpp {vr(x)}, {vr(x)}, {vr(x)} {ctl} row_mask:0xf bank_mask:0xf")

    def rnd2(x0, x1, t):
        a(f"v_cvt_pk_bf16_f32 {vr(t)}, {vr(x0)}, {vr(x1)}")
        a(f"v_lshlrev_b32 {vr(x0)}, 16, {vr(t)}")
        a(f"v_and_b32 {vr(x1)}, 0xffff0000, {vr(t)}")

    def rnd1(x):
        a(f"v_cvt_pk_bf16_f32 {vr(x)}, {vr(x)}, {vr(x)}")
        a(f"v_and_b32 {vr(x)}, 0xffff0000, {vr(x)}")

    def unpack(lo, hi, src):
        a(f"v_lshlrev_b32 {vr(lo)}, 16, {vr(src)}")
        a(f"v_and_b32 {vr(hi)}, 0xffff0000, {vr(src)}")

    def transpose(dst, src, nq, SLO, SHI):
        for q in range(nq):
            for h, sel in ((0, SLO), (1, SHI)):
                for i in range(4):
                    a(f"v_perm_b32 {vr(dst+(2*q+h)*4+i)}, {vr(src+(2*i+1)*nq+q)}, {vr(src+2*i*nq+q)}, s{sel}")

    def div_refined(qd, d, den, rden, t):
        a(f"v_mul_f32 {vr(qd)}, {vr(d)}, {vr(rden)}")
        a(f"v_fma_f32 {vr(t)}, -{vr(qd)}, {vr(den)}, {vr(d)}")
        a(f"v_fma_f32 {vr(qd)}, {vr(t)}, {vr(rden)}, {vr(qd)}")

    def spin_head(name, cnt):
        l = lab(name)
        a(f"s_mov_b32 s{cnt}, 0")
        a(f"{l}:")
        a(f"s_add_u32 s{cnt}, s{cnt}, 1")
        a(f"s_cmp_gt_u32 s{cnt}, {P['spin']}")
        a("s_cbranch_scc1 L_end")
        return l

    def sentinel_check(regs, t, loop):
        regs = list(regs)
        first = True
        while regs:
            if first:
                take = regs[:3]
                regs = regs[3:]
                if len(take) == 3:
                    a(f"v_max3_u32 {vr(t)}, {vr(take[0])}, {vr(take[1])}, {vr(take[2])}")
                elif len(take) == 2:
                    a(f"v_max_u32 {vr(t)}, {vr(take[0])}, {vr(take[1])}")
                else:
                    a(f"v_mov_b32 {vr(t)}, {vr(take[0])}")
                first = False
            else:
                take = regs[:2]
                regs = regs[2:]
                if len(take) == 2:
                    a(f"v_max3_u32 {vr(t)}, {vr(t)}, {vr(take[0])}, {vr(take[1])}")
                else:
                    a(f"v_max_u32 {vr(t)}, {vr(t)}, {vr(take[0])}")
        a(f"v_cmp_eq_u32 vcc, -1, {vr(t)}")
        a(f"s_cbranch_vccnz {loop}")

    def tag_check(regs, t, t2, loop, T):
        regs = list(regs)
        a(f"v_xor_b32 {vr(t)}, s{T}, {vr(regs[0])}")
        for r in regs[1:]:
            a(f"v_xor_b32 {vr(t2)}, s{T}, {vr(r)}")
            a(f"v_or_b32 {vr(t)}, {vr(t)}, {vr(t2)}")
        a(f"v_cmp_ne_u32 vcc, 0, {vr(t)}")
        a(f"s_cbranch_vccnz {loop}")

    a(f"{KN}:")
    a("s_cmp_ge_u32 s2, 256\ns_cbranch_scc1 L_end")
    stamp(0)
    a("v_lshrrev_b32 v1, 6, v0")
    a("s_and_b32 s32, s2, 7")
    a("s_lshr_b32 s33, s2, 3")
    a("v_readfirstlane_b32 s3, v1")
    a("v_and_b32 v0, 63, v0")
    a("s_and_b32 s34, s33, 3")
    a("s_lshr_b32 s35, s33, 2")
    a("s_cmp_ge_u32 s3, 4\ns_cbranch_scc1 L_helper")

    NV, D = P["NV"], P["depth"]
    VOFF, KOFF, KRD = 1, 2, 6
    M, L_, AL = 10, 11, 12
    T0, T1, T2 = 13, 14, 15
    Q, O, KF, S, PP, TT, VB = 16, 32, 64, 80, 88, 92, 96
    SK, SV = 36, 40
    KO, VO, LB = 44, 45, 46
    SLO, SHI = 47, 48
    CS = 50
    a("s_load_dwordx4 s[4:7], s[0:1], 8")
    if P["stamps"]:
        a("s_load_dwordx2 s[30:31], s[0:1], 104")
    stamp_init()
    a(f"v_lshlrev_b32 v{VOFF}, 4, v0")
    a(f"v_lshrrev_b32 v{T0}, 4, v0")
    a(f"v_and_b32 v{T1}, 15, v0")
    for r in range(4):
        a(f"v_lshl_add_u32 v{KOFF+r}, v{T0}, 2, {r}")
        a(f"v_xor_b32 v{KOFF+r}, v{KOFF+r}, v{T1}")
        a(f"v_lshlrev_b32 v{KOFF+r}, 4, v{KOFF+r}")
        a(f"v_lshl_add_u32 v{KOFF+r}, v{T0}, 8, v{KOFF+r}")
    a(f"s_lshl_b32 s{LB}, s3, 15")
    a("s_lshl_b32 s54, s34, 3\ns_add_u32 s54, s54, s32")
    a("s_lshl_b32 s55, s35, 2\ns_add_u32 s55, s55, s3")
    a(f"s_mul_i32 s55, s55, {P['gran']}")
    a(f"s_mul_i32 s56, s54, {P['stg']}")
    a(f"s_add_u32 s55, s55, s56\ns_and_b32 s{KO}, s55, 0x1fffff\ns_mov_b32 s{VO}, s{KO}")
    a("s_lshl_b32 s54, s54, 21")
    a("s_waitcnt lgkmcnt(0)")
    a(f"s_add_u32 s{SK}, s4, s54\ns_addc_u32 s{SK+1}, s5, 0\ns_and_b32 s{SK+1}, s{SK+1}, 0xffff\ns_mov_b32 s{SK+2}, 0x200000\ns_mov_b32 s{SK+3}, 0x20000")
    a(f"s_add_u32 s{SV}, s6, s54\ns_addc_u32 s{SV+1}, s7, 0\ns_and_b32 s{SV+1}, s{SV+1}, 0xffff\ns_mov_b32 s{SV+2}, 0x200000\ns_mov_b32 s{SV+3}, 0x20000")

    issued = []
    U = P["gran"] // 1024
    step = P["gran"] * 32
    assert U in (1, 2, 4)

    def throttle():
        if len(issued) >= D:
            a(f"s_waitcnt vmcnt({D-1})")

    def issueK(t):
        for j in range(8):
            if j % U == 0:
                a(f"s_add_u32 m0, s{LB}, {(t % 4) * 8192 + j * 1024}")
            throttle()
            a(f"buffer_load_dwordx4 v{KOFF+(j&3)}, {sr(SK,4)}, s{KO} offen offset:{(j%U)*1024} {P['kvpol']} lds")
            issued.append(("K", t))
            if j % U == U - 1:
                a(f"s_add_u32 s{KO}, s{KO}, {step}\ns_and_b32 s{KO}, s{KO}, 0x1fffff")

    def issueV(t):
        for j in range(8):
            throttle()
            r = VB + ((t % NV) * 8 + j) * 4
            a(f"buffer_load_dwordx4 {vr(r,4)}, v{VOFF}, {sr(SV,4)}, s{VO} offen offset:{(j%U)*1024} {P['kvpol']}")
            issued.append(("V", t))
            if j % U == U - 1:
                a(f"s_add_u32 s{VO}, s{VO}, {step}\ns_and_b32 s{VO}, s{VO}, 0x1fffff")

    def waitfor(ten, t):
        last = max(i for i, x in enumerate(issued) if x == (ten, t))
        n = len(issued) - 1 - last
        a(f"s_waitcnt vmcnt({min(n, 63)})")

    def qk(t):
        waitfor("K", t)
        for u in range(2):
            for jj in range(4):
                a(f"ds_read_b128 {vr(KF+4*jj,4)}, v{KRD+jj} offset:{(t%4)*8192+u*4096}")
            for jj in range(4):
                a(f"s_waitcnt lgkmcnt({3-jj})")
                c = vr(S+4*u, 4) if jj else "0"
                a(f"v_mfma_f32_16x16x32_bf16 {vr(S+4*u,4)}, {vr(KF+4*jj,4)}, {vr(Q+4*jj,4)}, {c}")

    def softmax(t):
        if P["semul"]:
            for i in range(4):
                a(f"v_cvt_pk_bf16_f32 v{TT+i}, v{S+2*i}, v{S+2*i+1}")
            for i in range(4):
                unpack(S+2*i, S+2*i+1, TT+i)
            for i in range(4):
                a(f"v_pk_mul_f32 {vr(S+2*i,2)}, {vr(S+2*i,2)}, {sr(CS,2)} op_sel_hi:[1,0]")
            for i in range(4):
                a(f"v_cvt_pk_bf16_f32 v{TT+i}, v{S+2*i}, v{S+2*i+1}")
            for i in range(4):
                unpack(S+2*i, S+2*i+1, TT+i)
        a(f"v_max3_f32 v{T0}, v{S}, v{S+1}, v{S+2}")
        a(f"v_max3_f32 v{T1}, v{S+3}, v{S+4}, v{S+5}")
        a(f"v_max3_f32 v{T0}, v{T0}, v{S+6}, v{S+7}")
        a(f"v_max_f32 v{T0}, v{T0}, v{T1}")
        xlane("v_max_f32", T0, T1, 32)
        xlane("v_max_f32", T0, T1, 16)
        if t == 0:
            a(f"v_mul_f32 v{M}, s{CS+2}, v{T0}")
        else:
            a(f"v_mul_f32 v{T0}, s{CS+2}, v{T0}")
            a(f"v_max_f32 v{T0}, v{T0}, v{M}")
            a(f"v_sub_f32 v{AL}, v{M}, v{T0}")
            a(f"v_mov_b32 v{M}, v{T0}")
            a(f"v_exp_f32 v{AL}, v{AL}")
        for i in range(4):
            a(f"v_pk_fma_f32 {vr(S+2*i,2)}, {vr(S+2*i,2)}, {sr(CS+2,2)}, {vr(M,2)} op_sel_hi:[1,0,0] neg_lo:[0,0,1] neg_hi:[0,0,1]")
        for i in range(8):
            a(f"v_exp_f32 v{S+i}, v{S+i}")
        if t > 0:
            for i in range(16):
                a(f"v_pk_mul_f32 {vr(O+2*i,2)}, {vr(O+2*i,2)}, {vr(AL,2)} op_sel_hi:[1,0]")
        for i in range(4):
            a(f"v_cvt_pk_bf16_f32 v{PP+i}, v{S+2*i}, v{S+2*i+1}")
        for i in range(4):
            unpack(S+2*i, S+2*i+1, PP+i)
        a(f"v_pk_add_f32 {vr(S,2)}, {vr(S,2)}, {vr(S+2,2)}")
        a(f"v_pk_add_f32 {vr(S+4,2)}, {vr(S+4,2)}, {vr(S+6,2)}")
        a(f"v_pk_add_f32 {vr(S,2)}, {vr(S,2)}, {vr(S+4,2)}")
        if t == 0:
            a(f"v_add_f32 v{L_}, v{S}, v{S+1}")
        else:
            a(f"v_add_f32 v{S}, v{S}, v{S+1}")
            a(f"v_fma_f32 v{L_}, v{L_}, v{AL}, v{S}")

    def pv(t):
        waitfor("V", t)
        vb = VB + (t % NV) * 32

        def perm(e):
            q, sel = e >> 1, (SHI if e & 1 else SLO)
            for i in range(4):
                a(f"v_perm_b32 v{KF+(e&3)*4+i}, v{vb+(2*i+1)*4+q}, v{vb+2*i*4+q}, s{sel}")
        perm(0)
        for e in range(8):
            if e < 7:
                perm(e+1)
            c = vr(O+4*e, 4) if t else "0"
            a(f"v_mfma_f32_16x16x32_bf16 {vr(O+4*e,4)}, {vr(KF+(e&3)*4,4)}, {vr(PP,4)}, {c}")

    order = P["order"]
    if order is None:
        order = "P0 K4 P1 V5 K5 P2 P3 V6 K6 P4 K7 V7 P5 P6 P7" if NV == 5 else \
                "P0 K4 V4 P1 K5 V5 P2 P3 K6 V6 P4 K7 V7 P5 P6 P7"
    for t in range(4):
        issueK(t)
        issueV(t)
        if t == 0:
            a(f"v_lshrrev_b32 v{T0}, 4, v0\nv_and_b32 v{T1}, 15, v0")
            a(f"v_and_b32 v{T2}, 3, v{T1}\nv_lshlrev_b32 v{T2}, 10, v{T2}")
            a(f"v_lshrrev_b32 v{M}, 2, v{T1}\nv_lshl_add_u32 v{T2}, v{M}, 8, v{T2}")
            a(f"v_add_u32 v{T2}, s{LB}, v{T2}")
            for jj in range(4):
                a(f"v_add_u32 v{KRD+jj}, {4*jj}, v{T0}")
                a(f"v_xor_b32 v{KRD+jj}, v{KRD+jj}, v{T1}")
                a(f"v_lshl_add_u32 v{KRD+jj}, v{KRD+jj}, 4, v{T2}")
            a(f"s_mov_b32 s{SLO}, 0x05040100\ns_mov_b32 s{SHI}, 0x07060302")
            a(f"s_mov_b32 s{CS}, {hexs(f2u(SCALE))}\ns_mov_b32 s{CS+1}, s{CS}")
            c2 = LOG2E if P["semul"] else SCALE * LOG2E
            a(f"s_mov_b32 s{CS+2}, {hexs(f2u(c2))}\ns_mov_b32 s{CS+3}, s{CS+2}")
            a(f"v_and_b32 v{T2}, 3, v0\nv_lshlrev_b32 v{T2}, 8, v{T2}\nv_lshl_add_u32 v{T2}, v{T0}, 4, v{T2}")
            a(f"v_add_u32 v{TT}, {QL}, v{T2}")
    for t in range(4, NV):
        issueV(t)
    stamp(1)
    a("s_barrier")
    stamp(2)
    for jj in range(4):
        a(f"ds_read_b128 {vr(Q+4*jj,4)}, v{TT} offset:{jj*64}")
    a("s_waitcnt lgkmcnt(0)")
    for tok in order.split():
        k, t = tok[0], int(tok[1:])
        if k == "K":
            issueK(t)
        elif k == "V":
            issueV(t)
        else:
            qk(t)
            softmax(t)
            if t == 7:
                stamp(3)
            pv(t)
    stamp(4)
    xlane("v_add_f32", L_, T1, 32)
    xlane("v_add_f32", L_, T1, 16)
    a(f"v_and_b32 v{T0}, 3, v0\nv_lshlrev_b32 v{T0}, 4, v{T0}")
    a(f"v_lshrrev_b32 v{T1}, 4, v0\nv_lshl_add_u32 v{T0}, v{T1}, 2, v{T0}")
    a("s_mul_i32 s54, s3, 2560\ns_add_u32 s54, s54, %d" % OL)
    a(f"v_add_u32 v{T0}, s54, v{T0}")
    a(f"v_add_u32 v{T1}, {12*80}, v{T0}\nv_add_u32 v{T2}, {24*80}, v{T0}")
    a("s_mov_b32 exec_lo, 0x000f000f\ns_mov_b32 exec_hi, 0x000f000f")
    for r in range(4):
        for e in range(0, 8, 2):
            re_ = 8*r + e
            base, r0 = ((T0, 0) if re_ < 12 else (T1, 12) if re_ < 24 else (T2, 24))
            a(f"ds_write2_b32 v{base}, v{O+4*e+r}, v{O+4*(e+1)+r} offset0:{(re_-r0)*20} offset1:{(re_+1-r0)*20}")
    a("s_mov_b64 exec, 0xf")
    a("s_lshl_b32 s54, s3, 5\ns_add_u32 s54, s54, %d" % STL)
    a(f"v_lshl_add_u32 v{T0}, v0, 3, s54")
    a(f"ds_write_b64 v{T0}, {vr(M,2)}")
    a("s_waitcnt lgkmcnt(0)")
    a("s_barrier")
    stamp(5)
    stamp_store(30)
    a("s_endpgm")

    a("L_helper:")
    HW, T, SLO, SHI = 36, 37, 38, 39
    SWS, S1, S2 = 40, 44, 48
    CNT = 52
    G_, M_ = 1, 2
    a("s_load_dwordx16 s[4:19], s[0:1], 0")
    a("s_load_dwordx8 s[20:27], s[0:1], 64")
    a("s_load_dwordx4 s[28:31], s[0:1], 96")
    if P["prio"]:
        a("s_setprio 2")
    stamp_init()
    a(f"s_sub_u32 s{HW}, s3, 4")
    a(f"v_lshrrev_b32 v{G_}, 4, v0\nv_and_b32 v{M_}, 15, v0")
    a(f"s_mov_b32 s{SLO}, 0x05040100\ns_mov_b32 s{SHI}, 0x07060302")
    a("s_waitcnt lgkmcnt(0)")
    a(f"s_load_dword s{T}, s[30:31], {EPOCH}")
    srd(SWS, 30, 0x10000000)
    a(f"s_cmp_eq_u32 s{HW}, 1\ns_cbranch_scc1 L_B")
    a(f"s_cmp_eq_u32 s{HW}, 2\ns_cbranch_scc1 L_Q")
    a(f"s_cmp_eq_u32 s{HW}, 3\ns_cbranch_scc1 L_idle")

    def mktag():
        a("s_waitcnt lgkmcnt(0)")
        a(f"s_mul_i32 s{T}, s{T}, 0x9E3779B1\ns_add_u32 s{T}, s{T}, 0x7F4A7C15")

    scr = 53

    a("s_cmp_ge_u32 s33, 24\ns_cbranch_scc1 L_idle")
    srd(S1, 24, 512*3072*2)
    srd(S2, 22, 4096)
    CA, WA, DA, TA = 16, 32, 96, 112
    a("s_lshr_b32 s54, s33, 2\ns_lshl_b32 s54, s54, 3\ns_add_u32 s54, s54, s32\ns_lshl_b32 s54, s54, 2")
    a("s_and_b32 s55, s33, 3\ns_add_u32 s54, s54, s55")
    a("s_lshl_b32 s55, s54, 5")
    a(f"v_and_b32 v3, 3, v{M_}\nv_lshrrev_b32 v4, 2, v{M_}")
    a(f"v_lshlrev_b32 v5, 10, v3\nv_lshl_add_u32 v5, v{G_}, 6, v5\nv_lshl_add_u32 v5, v4, 4, v5")
    for kb in range(4):
        a(f"buffer_load_dwordx4 {vr(CA+4*kb,4)}, v5, {sr(S2,4)}, 0 offen offset:{256*kb}")
    a(f"v_lshlrev_b32 v6, 5, v{G_}\nv_lshl_add_u32 v6, v4, 3, v6\nv_mul_u32_u24 v6, 6144, v6\nv_lshl_add_u32 v6, v3, 3, v6")
    for kb in range(4):
        for j in range(8):
            a(f"s_add_u32 s56, s55, {(128*kb+j)*6144}")
            a(f"buffer_load_dwordx2 {vr(WA+(kb*8+j)*2,2)}, v6, {sr(S1,4)}, s56 offen {P['wpol']}")
    a(f"s_mov_b32 s57, {hexs(f2u(-LOG2E))}")
    for kb in range(4):
        a(f"s_waitcnt vmcnt({32+3-kb})")
        for i in range(4):
            r = CA + 4*kb + i
            unpack(8+2*i, 9+2*i, r)
        for i in range(8):
            a(f"v_mul_f32 v{TA+i}, s57, v{8+i}")
        for i in range(8):
            a(f"v_exp_f32 v{TA+i}, v{TA+i}")
        for i in range(8):
            a(f"v_add_f32 v{TA+i}, 1.0, v{TA+i}")
        for i in range(8):
            a(f"v_rcp_f32 v{TA+i}, v{TA+i}")
        for i in range(8):
            a(f"v_mul_f32 v{8+i}, v{8+i}, v{TA+i}")
        for i in range(4):
            a(f"v_cvt_pk_bf16_f32 v{CA+4*kb+i}, v{8+2*i}, v{9+2*i}")
    stamp(1)
    for kb in range(4):
        a(f"s_waitcnt vmcnt({24-8*kb})")
        transpose(TA, WA+kb*16, 2, SLO, SHI)
        for e in range(4):
            c = vr(DA+4*e, 4) if kb else "0"
            a(f"v_mfma_f32_16x16x32_bf16 {vr(DA+4*e,4)}, {vr(CA+4*kb,4)}, {vr(TA+4*e,4)}, {c}")
    stamp(2)
    a(f"s_mov_b32 s{scr}, {SCR}")
    a(f"v_lshlrev_b32 v7, 8, v{G_}\nv_lshl_add_u32 v7, v3, 6, v7\nv_add_u32 v7, s{scr}, v7")
    a("s_mov_b32 exec_lo, 0x00f0000f\ns_mov_b32 exec_hi, 0xf0000f00")
    for e in range(4):
        a(f"ds_write_b128 v7, {vr(DA+4*e,4)} offset:{16*e}")
    a("s_mov_b64 exec, -1")
    a("v_and_b32 v7, 7, v0\nv_lshrrev_b32 v8, 3, v0\nv_and_b32 v8, 3, v8")
    a(f"v_lshlrev_b32 v9, 5, v7\nv_lshl_add_u32 v9, v8, 2, v9\nv_add_u32 v9, s{scr}, v9")
    a("s_waitcnt lgkmcnt(0)")
    for p in range(4):
        a(f"ds_read2_b32 {vr(16+2*p,2)}, v9 offset0:{64*p} offset1:{64*p+4}")
    a("v_mul_u32_u24 v8, 1536, v8\nv_add_u32 v8, v8, v7\nv_lshlrev_b32 v8, 3, v8")
    a(f"s_lshl_b32 s55, s54, 6\ns_add_u32 s55, s55, {MOD}")
    mktag()
    a("v_pk_add_f32 v[16:17], v[16:17], v[18:19]\nv_pk_add_f32 v[20:21], v[20:21], v[22:23]")
    a("v_pk_add_f32 v[16:17], v[16:17], v[20:21]")
    a(f"v_cvt_pk_bf16_f32 v16, v16, v17\nv_mov_b32 v17, s{T}")
    a("s_mov_b32 exec_lo, -1\ns_mov_b32 exec_hi, 0")
    a(f"buffer_store_dwordx2 v[16:17], v8, {sr(SWS,4)}, s55 offen sc1")
    a("s_mov_b64 exec, -1")
    stamp(3)
    a("s_branch L_bar1")

    a("L_B:")
    XS, XO, Y, MG, HH, WB, TB, DB = 16, 32, 40, 48, 36, 64, 128, 192
    srd(S1, 10, 512*4096*2)
    srd(S2, 4, 4096)
    a("s_lshl_b32 s54, s34, 3\ns_add_u32 s54, s54, s32")
    a("v_lshlrev_b32 v3, 4, v0")
    for i in range(4):
        a(f"v_mov_b32 v{8+i}, -1")
    a("s_and_b32 s58, s33, 3\ns_lshr_b32 s59, s33, 2")
    a(f"s_lshl_b32 s55, s58, 16\ns_lshl_b32 s56, s32, 11\ns_add_u32 s55, s55, s56\ns_lshl_b32 s56, s59, 8\ns_add_u32 s55, s55, s56")
    a(f"s_add_u32 s60, s55, {QP}")
    a(f"v_lshlrev_b32 v4, 14, v{G_}\nv_lshl_add_u32 v4, v{M_}, 4, v4")
    a(f"buffer_store_dwordx4 v[8:11], v4, {sr(SWS,4)}, s60 offen sc1")
    a(f"s_lshl_b32 s55, s54, 3\ns_add_u32 s55, s55, s35\ns_mul_i32 s55, s55, {OREC}\ns_add_u32 s55, s55, {OP}")
    a(f"buffer_store_dwordx4 v[8:11], v3, {sr(SWS,4)}, s55 offen sc1")
    a(f"buffer_store_dwordx4 v[8:11], v3, {sr(SWS,4)}, s55 offen offset:1024 sc1")
    a("s_mov_b64 exec, 0xff")
    a(f"buffer_store_dwordx4 v[8:11], v3, {sr(SWS,4)}, s55 offen offset:2048 sc1")
    a(f"s_lshl_b32 s55, s54, 11\ns_lshl_b32 s56, s35, 8\ns_add_u32 s55, s55, s56\ns_add_u32 s55, s55, {WP}")
    a("s_mov_b64 exec, 0xffff")
    a(f"buffer_store_dwordx4 v[8:11], v3, {sr(SWS,4)}, s55 offen sc1")
    a("s_mov_b64 exec, -1")
    lnod = lab("nodp")
    a(f"s_cmp_eq_u32 s35, 7\ns_cbranch_scc1 {lnod}")
    a(f"s_mul_i32 s55, s34, 56\ns_mul_i32 s56, s32, 7\ns_add_u32 s55, s55, s56\ns_add_u32 s55, s55, s35\ns_lshl_b32 s55, s55, 11\ns_add_u32 s55, s55, {DP}")
    a(f"buffer_store_dwordx4 v[8:11], v3, {sr(SWS,4)}, s55 offen sc1")
    a(f"buffer_store_dwordx4 v[8:11], v3, {sr(SWS,4)}, s55 offen offset:1024 sc1")
    a(f"{lnod}:")
    a(f"v_and_b32 v4, 3, v{M_}\nv_lshrrev_b32 v5, 2, v{M_}")
    a(f"v_lshl_add_u32 v6, v{G_}, 2, v5\nv_lshlrev_b32 v6, 6, v6\nv_lshl_add_u32 v6, v4, 10, v6")
    for i in range(4):
        a(f"buffer_load_dwordx4 {vr(XS+4*i,4)}, v6, {sr(S2,4)}, 0 offen offset:{16*i}")
    a(f"v_and_b32 v7, 1, v5\nv_lshlrev_b32 v7, 3, v7\nv_lshrrev_b32 v12, 1, v5\nv_lshl_add_u32 v7, v12, 6, v7\nv_lshl_add_u32 v7, v{G_}, 4, v7")
    a("s_lshl_b32 s55, s58, 7\nv_add_u32 v7, s55, v7")
    a("v_lshlrev_b32 v12, 1, v7\nv_lshl_add_u32 v12, v4, 10, v12")
    a(f"buffer_load_dwordx4 {vr(XO,4)}, v12, {sr(S2,4)}, 0 offen")
    a(f"v_lshrrev_b32 v12, 3, v{M_}\nv_lshlrev_b32 v12, 3, v12\nv_lshl_add_u32 v12, v{G_}, 4, v12\nv_lshlrev_b32 v12, 13, v12")
    a(f"v_and_b32 v13, 7, v{M_}\nv_lshl_add_u32 v12, v13, 4, v12")
    a("s_lshl_b32 s55, s58, 20\ns_lshl_b32 s56, s32, 10\ns_add_u32 s55, s55, s56\ns_lshl_b32 s56, s59, 7\ns_add_u32 s55, s55, s56")
    for rb in range(2):
        for j in range(8):
            a(f"s_add_u32 s56, s55, {(64*rb+j)*8192}")
            a(f"buffer_load_dwordx4 {vr(WB+(rb*8+j)*4,4)}, v12, {sr(S1,4)}, s56 offen {P['wpol']}")
    a("v_mul_u32_u24 v13, 1536, v4\nv_lshrrev_b32 v14, 1, v7\nv_add_u32 v13, v13, v14\nv_lshlrev_b32 v13, 3, v13")
    a("s_waitcnt vmcnt(17)")
    for i in range(16):
        unpack(TB+2*i, TB+2*i+1, XS+i)
    a(f"v_pk_add_f32 v[14:15], {vr(TB,2)}, {vr(TB+2,2)}")
    for i in range(2, 16):
        a(f"v_pk_add_f32 v[14:15], v[14:15], {vr(TB+2*i,2)}")
    a("v_add_f32 v14, v14, v15")
    dpp_add([14], "row_ror:4")
    dpp_add([14], "row_ror:8")
    xlane("v_add_f32", 14, 15, 16)
    xlane("v_add_f32", 14, 15, 32)
    a(f"v_mul_f32 v14, {hexs(f2u(1/512))}, v14")
    for i in range(32):
        a(f"v_sub_f32 v{TB+i}, v{TB+i}, v14")
    a(f"v_pk_mul_f32 v[16:17], {vr(TB,2)}, {vr(TB,2)}")
    for i in range(1, 16):
        a(f"v_pk_fma_f32 v[16:17], {vr(TB+2*i,2)}, {vr(TB+2*i,2)}, v[16:17]")
    a("v_add_f32 v15, v16, v17")
    dpp_add([15], "row_ror:4")
    dpp_add([15], "row_ror:8")
    xlane("v_add_f32", 15, 16, 16)
    xlane("v_add_f32", 15, 16, 32)
    a(f"v_mul_f32 v15, {hexs(f2u(1/512))}, v15")
    rnd2(14, 15, 16)
    a(f"v_add_f32 v15, {hexs(f2u(1e-5))}, v15")
    rnd1(15)
    a("v_sqrt_f32 v15, v15")
    rnd1(15)
    a("v_rcp_f32 v16, v15")
    a("s_waitcnt vmcnt(16)")
    for i in range(4):
        unpack(Y+2*i, Y+2*i+1, XO+i)
    for i in range(8):
        a(f"v_sub_f32 v{Y+i}, v{Y+i}, v14")
    for i in range(4):
        rnd2(Y+2*i, Y+2*i+1, 17)
    for i in range(8):
        a(f"v_mov_b32 v18, v{Y+i}")
        div_refined(Y+i, 18, 15, 16, 19)
    for i in range(4):
        rnd2(Y+2*i, Y+2*i+1, 17)
    stamp(1)
    mktag()
    a("s_waitcnt vmcnt(0)")
    stamp(2)
    a(f"s_lshl_b32 s55, s2, 2\ns_add_u32 s55, s55, {READY}\nv_mov_b32 v16, s{T}\nv_mov_b32 v17, 0")
    a("s_mov_b64 exec, 1")
    a(f"buffer_store_dword v16, v17, {sr(SWS,4)}, s55 offen sc1")
    a("s_mov_b64 exec, -1")
    transpose(TB, WB, 4, SLO, SHI)
    transpose(TB+32, WB+32, 4, SLO, SHI)
    a(f"s_mov_b32 s55, {MOD}\ns_mov_b32 s56, {MOD+2048}")
    lp = spin_head("modpoll", CNT)
    a(f"buffer_load_dwordx4 {vr(MG,4)}, v13, {sr(SWS,4)}, s55 offen sc1")
    a(f"buffer_load_dwordx4 {vr(MG+4,4)}, v13, {sr(SWS,4)}, s55 offen offset:16 sc1")
    a(f"buffer_load_dwordx4 {vr(MG+8,4)}, v13, {sr(SWS,4)}, s56 offen sc1")
    a(f"buffer_load_dwordx4 {vr(MG+12,4)}, v13, {sr(SWS,4)}, s56 offen offset:16 sc1")
    a("s_waitcnt vmcnt(0)")
    tag_check([MG+2*i+1 for i in range(8)], 14, 15, lp, T)
    stamp(3)
    for i in range(4):
        unpack(16+2*i, 17+2*i, MG+8+2*i)
    for i in range(8):
        a(f"v_add_f32 v{16+i}, 1.0, v{16+i}")
    for i in range(4):
        rnd2(16+2*i, 17+2*i, 14)
    for i in range(8):
        a(f"v_mul_f32 v{16+i}, v{16+i}, v{Y+i}")
    for i in range(4):
        rnd2(16+2*i, 17+2*i, 14)
    for i in range(4):
        unpack(24+2*i, 25+2*i, MG+2*i)
    for i in range(8):
        a(f"v_add_f32 v{16+i}, v{16+i}, v{24+i}")
    for i in range(4):
        a(f"v_cvt_pk_bf16_f32 v{HH+i}, v{16+2*i}, v{17+2*i}")
    for i in range(4):
        a(f"v_mov_b32_dpp v{32+i}, v{HH+i} row_ror:8 row_mask:0xf bank_mask:0xf")
    for e in range(8):
        a(f"v_mfma_f32_16x16x32_bf16 {vr(DB+4*e,4)}, {vr(HH,4)}, {vr(TB+4*e,4)}, 0")
    for e in range(8):
        a(f"v_mfma_f32_16x16x32_bf16 {vr(DB+4*e,4)}, {vr(32,4)}, {vr(TB+32+4*e,4)}, {vr(DB+4*e,4)}")
    a(f"v_and_b32 v4, 7, v0\nv_lshlrev_b32 v4, 7, v4\nv_lshl_add_u32 v4, v{G_}, 10, v4\nv_add_u32 v4, {SCR+2048}, v4")
    a("s_mov_b32 exec_lo, 0xff0000ff\ns_mov_b32 exec_hi, 0")
    for e in range(8):
        a(f"ds_write_b128 v4, {vr(DB+4*e,4)} offset:{16*e}")
    a("s_mov_b64 exec, -1")
    a(f"v_add_u32 v4, {SCR+2048}, v3\nv_lshlrev_b32 v5, 2, v0")
    a("s_waitcnt lgkmcnt(0)")
    a("ds_read_b128 v[16:19], v4\nds_read_b128 v[20:23], v4 offset:1024")
    a("s_add_u32 s55, s60, 16384\ns_add_u32 s56, s60, 32768\ns_add_u32 s57, s60, 49152")
    a("s_waitcnt lgkmcnt(0)")
    a("v_pk_add_f32 v[16:17], v[16:17], v[20:21]\nv_pk_add_f32 v[18:19], v[18:19], v[22:23]")
    for i in range(4):
        a(f"v_min_u32 v{16+i}, -2, v{16+i}")
    for i, so in enumerate((60, 55, 56, 57)):
        a(f"buffer_store_dword v{16+i}, v5, {sr(SWS,4)}, s{so} offen sc1")
    stamp(4)
    a("s_branch L_bar1")

    a("L_Q:")
    a("v_lshlrev_b32 v3, 4, v0\nv_lshlrev_b32 v4, 5, v0")
    a(f"s_lshl_b32 s55, s34, 14\ns_lshl_b32 s56, s32, 11\ns_add_u32 s55, s55, s56\ns_add_u32 s55, s55, {QP}")
    a("s_add_u32 s56, s55, 0x10000\ns_add_u32 s57, s55, 0x20000\ns_add_u32 s58, s55, 0x30000")
    a(f"s_mov_b32 s59, {READY}")
    mktag()
    lp = spin_head("rdypoll", CNT)
    a(f"buffer_load_dwordx4 v[8:11], v3, {sr(SWS,4)}, s59 offen sc1")
    a("s_waitcnt vmcnt(0)")
    tag_check([8, 9, 10, 11], 12, 13, lp, T)
    stamp(1)
    lp = spin_head("qpoll", CNT)
    for kq, so in enumerate((55, 56, 57, 58)):
        a(f"buffer_load_dwordx4 {vr(16+8*kq,4)}, v4, {sr(SWS,4)}, s{so} offen sc1")
        a(f"buffer_load_dwordx4 {vr(20+8*kq,4)}, v4, {sr(SWS,4)}, s{so} offen offset:16 sc1")
    a("s_waitcnt vmcnt(0)")
    sentinel_check(range(16, 48), 12, lp)
    stamp(2)
    for i in range(4):
        a(f"v_pk_add_f32 {vr(16+2*i,2)}, {vr(16+2*i,2)}, {vr(24+2*i,2)}")
        a(f"v_pk_add_f32 {vr(32+2*i,2)}, {vr(32+2*i,2)}, {vr(40+2*i,2)}")
    for i in range(4):
        a(f"v_pk_add_f32 {vr(16+2*i,2)}, {vr(16+2*i,2)}, {vr(32+2*i,2)}")
    for i in range(4):
        a(f"v_cvt_pk_bf16_f32 v{8+i}, v{16+2*i}, v{17+2*i}")
    a(f"v_add_u32 v3, {QL}, v3")
    a("ds_write_b128 v3, v[8:11]")
    a("s_waitcnt lgkmcnt(0)")
    a("s_branch L_bar1")

    a("L_idle:")
    mktag()
    a("L_bar1:")
    a("s_barrier")
    stamp(5)

    Z = [64 + 32*i for i in range(6)]
    XA, GA, SBv, CB1 = 16, 18, 20, 22
    GBv = 12
    srd(S2, 4, 4096)
    srd(S1, 12, 4096*512*2)
    a("s_lshl_b32 s54, s34, 3\ns_add_u32 s54, s54, s32")
    a(f"s_mul_i32 s61, s34, {1536*8}\ns_add_u32 s61, s61, {MOD}")
    a(f"s_lshl_b32 s53, s{HW}, 11\ns_add_u32 s53, s53, {SCR}")
    a("s_cmp_eq_u32 s35, 7\ns_cbranch_scc1 L_mid_final")
    a(f"s_lshl_b32 s55, s{HW}, 8\ns_lshl_b32 s56, s34, 10\ns_add_u32 s55, s55, s56\nv_lshlrev_b32 v3, 2, v0")
    a(f"buffer_load_dword v24, v3, {sr(S2,4)}, s55 offen")
    a(f"s_lshl_b32 s55, s{HW}, 9\ns_add_u32 s55, s55, s61\nv_lshlrev_b32 v3, 3, v0")
    a("s_add_u32 s56, s55, 4096\ns_add_u32 s57, s55, 8192")
    lp = spin_head("gpoll", CNT)
    a(f"buffer_load_dwordx2 v[26:27], v3, {sr(SWS,4)}, s56 offen sc1")
    a(f"buffer_load_dwordx2 v[28:29], v3, {sr(SWS,4)}, s56 offen offset:2048 sc1")
    a(f"buffer_load_dwordx2 v[30:31], v3, {sr(SWS,4)}, s57 offen sc1")
    a("s_waitcnt vmcnt(0)")
    tag_check([27, 29, 31], 4, 5, lp, T)
    unpack(XA, XA+1, 24)
    unpack(GA, GA+1, 26)
    unpack(SBv, SBv+1, 28)
    unpack(CB1, CB1+1, 30)
    a(f"v_add_f32 v{CB1}, 1.0, v{CB1}\nv_add_f32 v{CB1+1}, 1.0, v{CB1+1}")
    rnd2(CB1, CB1+1, 4)
    a("s_branch L_mid_w")

    a("L_mid_final:")
    a(f"s_and_b32 s55, s32, 1\ns_lshl_b32 s55, s55, 3\ns_lshr_b32 s56, s{HW}, 1\ns_lshl_b32 s56, s56, 2\ns_add_u32 s62, s55, s56")
    a(f"s_lshr_b32 s55, s32, 1\ns_lshl_b32 s55, s55, 7\ns_lshl_b32 s56, s62, 3\ns_add_u32 s55, s55, s56")
    a(f"s_and_b32 s56, s{HW}, 1\ns_lshl_b32 s56, s56, 2\ns_add_u32 s63, s55, s56")
    a("v_and_b32 v6, 3, v0\nv_lshlrev_b32 v7, 3, v6\nv_add_u32 v7, s63, v7")
    a("v_lshlrev_b32 v3, 1, v7\ns_lshl_b32 s55, s34, 10")
    a(f"buffer_load_dwordx2 v[24:25], v3, {sr(S2,4)}, s55 offen")
    a("v_lshlrev_b32 v3, 2, v7\ns_add_u32 s56, s61, 4096\ns_add_u32 s57, s61, 10240")
    lp = spin_head("fpoll", CNT)
    a(f"buffer_load_dwordx4 v[28:31], v3, {sr(SWS,4)}, s56 offen sc1")
    a(f"buffer_load_dwordx4 v[32:35], v3, {sr(SWS,4)}, s57 offen sc1")
    a("s_waitcnt vmcnt(0)")
    tag_check([29, 31, 33, 35], 4, 5, lp, T)
    unpack(16, 17, 24)
    unpack(18, 19, 25)
    unpack(20, 21, 28)
    unpack(22, 23, 30)
    unpack(GBv, GBv+1, 32)
    unpack(GBv+2, GBv+3, 34)

    a("L_mid_w:")
    a(f"v_lshrrev_b32 v4, 3, v{M_}\nv_lshlrev_b32 v4, 3, v4\nv_lshl_add_u32 v4, v{G_}, 4, v4\nv_lshlrev_b32 v4, 10, v4")
    a(f"v_and_b32 v5, 7, v{M_}\nv_lshl_add_u32 v4, v5, 4, v4")
    a(f"s_lshl_b32 s55, s32, 19\ns_lshl_b32 s56, s{HW}, 17\ns_add_u32 s55, s55, s56\ns_lshl_b32 s56, s35, 7\ns_add_u32 s55, s55, s56")
    for rb in range(2):
        for j in range(8):
            if j % 4 == 0:
                a(f"s_add_u32 s56, s55, {(64*rb+j)*1024}")
            a(f"buffer_load_dwordx4 {vr(Z[1+rb]+4*j,4)}, v4, {sr(S1,4)}, s56 offen offset:{(j%4)*1024} {P['tailpol']}")
    a("s_cmp_eq_u32 s35, 7\ns_cbranch_scc1 L_mid_final2")
    a("s_mul_i32 s59, s32, 7\ns_add_u32 s59, s59, s35")
    a(f"s_cmp_ge_u32 s{HW}, 2\ns_cselect_b32 s{S1}, s18, s16\ns_cselect_b32 s{S1+1}, s19, s17")
    a(f"s_and_b32 s{S1+1}, s{S1+1}, 0xffff\ns_mov_b32 s{S1+2}, {512*1792*2}")
    a(f"v_lshrrev_b32 v4, 2, v{M_}\nv_lshlrev_b32 v4, 3, v4\nv_lshl_add_u32 v4, v{G_}, 5, v4\nv_mul_u32_u24 v4, 3584, v4")
    a(f"v_and_b32 v5, 3, v{M_}\nv_lshl_add_u32 v4, v5, 4, v4")
    a(f"s_and_b32 s55, s{HW}, 1\ns_mul_i32 s55, s55, {256*3584}\ns_lshl_b32 s56, s59, 6\ns_add_u32 s55, s55, s56")
    for rb in range(2):
        for j in range(8):
            if j % 2 == 0:
                a(f"s_add_u32 s56, s55, {(128*rb+j)*3584}")
            a(f"buffer_load_dwordx4 {vr(Z[3+rb]+4*j,4)}, v4, {sr(S1,4)}, s56 offen offset:{(j%2)*3584} {P['tailpol']}")
    srd(S2, 20, 1792*512*2)
    a(f"v_lshlrev_b32 v4, 13, v{G_}\nv_lshl_add_u32 v4, v{M_}, 4, v4")
    a(f"s_lshl_b32 s55, s59, 15\ns_lshl_b32 s56, s{HW}, 8\ns_add_u32 s55, s55, s56")
    for j in range(8):
        if j % 4 == 0:
            a(f"s_add_u32 s56, s55, {j*1024}")
        a(f"buffer_load_dwordx4 {vr(Z[5]+4*j,4)}, v4, {sr(S2,4)}, s56 offen offset:{(j%4)*1024} {P['tailpol']}")
    for i in range(5):
        a(f"s_waitcnt vmcnt({32-8*i})")
        transpose(Z[i], Z[i+1], 4, SLO, SHI)
    a("s_branch L_bar2")
    a("L_mid_final2:")
    for i in range(2):
        a(f"s_waitcnt vmcnt({8-8*i})")
        transpose(Z[i], Z[i+1], 4, SLO, SHI)

    a("L_bar2:")
    a("v_and_b32 v3, 31, v0\nv_lshrrev_b32 v4, 5, v0")
    a(f"v_mul_u32_u24 v8, 80, v3\nv_mul_u32_u24 v5, 5120, v4\nv_add_u32 v8, v8, v5")
    a(f"s_lshl_b32 s55, s{HW}, 4\ns_add_u32 s55, s55, {OL}\nv_add_u32 v8, s55, v8")
    a(f"s_lshl_b32 s55, s{HW}, 3\ns_add_u32 s55, s55, {STL}\nv_mov_b32 v9, s55")
    a(f"s_lshl_b32 s55, s54, 3\ns_mul_i32 s55, s55, {OREC}\ns_add_u32 s60, s55, {OP}")
    a(f"s_lshl_b32 s55, s{HW}, 9\nv_lshlrev_b32 v10, 4, v3\nv_add_u32 v10, s55, v10")
    a(f"s_lshl_b32 s55, s{HW}, 3\ns_add_u32 s55, s55, 2048\nv_mov_b32 v11, s55")
    a(f"v_mul_u32_u24 v5, {OREC}, v4\nv_add_u32 v56, v10, v5\nv_add_u32 v57, v11, v5")
    a(f"s_mul_i32 s58, s35, {OREC}\ns_add_u32 s58, s58, s60")
    a(f"v_lshlrev_b32 v58, 1, v3\nv_add_u32 v58, s53, v58")
    a(f"v_lshrrev_b32 v5, 2, v{M_}\nv_and_b32 v5, 1, v5\nv_lshlrev_b32 v5, 4, v5\nv_lshl_add_u32 v5, v{G_}, 5, v5\nv_add_u32 v59, s53, v5")
    a(f"s_lshl_b32 s55, s{HW}, 9\ns_add_u32 s55, s55, {REDW}\nv_and_b32 v5, 7, v0\nv_lshlrev_b32 v5, 5, v5\nv_lshl_add_u32 v5, v{G_}, 8, v5\nv_add_u32 v60, s55, v5")
    a("s_mov_b32 s56, 0\ns_mov_b32 s57, -1")
    stamp(6)
    a("s_barrier")
    stamp(7)
    for i in range(4):
        a(f"ds_read_b64 {vr(24+2*i,2)}, v9 offset:{32*i}")
    a("ds_read_b128 v[32:35], v8\nds_read_b128 v[36:39], v8 offset:2560")
    a("s_waitcnt lgkmcnt(2)")
    a("v_max3_f32 v40, v24, v26, v28\nv_max_f32 v40, v40, v30")
    for i in range(4):
        a(f"v_sub_f32 v{24+2*i}, v{24+2*i}, v40")
    for i in range(4):
        a(f"v_exp_f32 v{24+2*i}, v{24+2*i}")
    a("v_mul_f32 v41, v24, v25\nv_fmac_f32 v41, v26, v27\nv_fmac_f32 v41, v28, v29\nv_fmac_f32 v41, v30, v31")
    a("v_cndmask_b32 v24, v24, v28, s[56:57]\nv_cndmask_b32 v26, v26, v30, s[56:57]")
    a("s_waitcnt lgkmcnt(0)")
    for i in range(4):
        a(f"v_mul_f32 v{32+i}, v{32+i}, v24")
    for i in range(4):
        a(f"v_fmac_f32 v{32+i}, v{36+i}, v26")
    xlane_multi("v_add_f32", [32, 33, 34, 35], [36, 37, 38, 39], 32)
    for r in (32, 33, 34, 35, 40, 41):
        a(f"v_min_u32 v{r}, -2, v{r}")
    a("s_mov_b32 exec_lo, -1\ns_mov_b32 exec_hi, 0")
    a(f"buffer_store_dwordx4 v[32:35], v10, {sr(SWS,4)}, s58 offen sc1")
    a("s_mov_b64 exec, 1")
    a(f"buffer_store_dwordx2 v[40:41], v11, {sr(SWS,4)}, s58 offen sc1")
    a("s_mov_b64 exec, -1")
    stamp(8)
    ZG = Z[5]
    OG = Z[5] + 16
    for i in range(1, 4):
        a(f"s_add_u32 s{96+i}, s60, {2*i*OREC}")
    lp = spin_head("h1", CNT)
    for i in range(4):
        so = 60 if i == 0 else 96 + i
        a(f"buffer_load_dwordx2 {vr(OG+2*i,2)}, v57, {sr(SWS,4)}, s{so} offen sc1")
        a(f"buffer_load_dwordx4 {vr(ZG+4*i,4)}, v56, {sr(SWS,4)}, s{so} offen sc1")
    a("s_waitcnt vmcnt(0)")
    sentinel_check(range(ZG, ZG+24), 4, lp)
    stamp(9)
    a(f"v_max3_f32 v40, v{OG}, v{OG+2}, v{OG+4}\nv_max_f32 v40, v40, v{OG+6}")
    xlane("v_max_f32", 40, 41, 32)
    for i in range(4):
        a(f"v_sub_f32 v{OG+2*i}, v{OG+2*i}, v40")
    for i in range(4):
        a(f"v_exp_f32 v{OG+2*i}, v{OG+2*i}")
    a(f"v_mul_f32 v36, v{OG}, v{OG+1}")
    for i in range(1, 4):
        a(f"v_fmac_f32 v36, v{OG+2*i}, v{OG+2*i+1}")
    for k in range(4):
        a(f"v_mul_f32 v{32+k}, v{ZG+k}, v{OG}")
    for i in range(1, 4):
        for k in range(4):
            a(f"v_fmac_f32 v{32+k}, v{ZG+4*i+k}, v{OG+2*i}")
    xlane_multi("v_add_f32", [36, 32, 33, 34, 35], [41, 37, 38, 39, 40], 32)
    a("v_rcp_f32 v36, v36")
    for k in range(4):
        a(f"v_mul_f32 v{32+k}, v{32+k}, v36")
    a("v_cvt_pk_bf16_f32 v32, v32, v33\nv_cvt_pk_bf16_f32 v33, v34, v35")
    a("ds_write_b16 v58, v32\nds_write_b16_d16_hi v58, v32 offset:64\nds_write_b16 v58, v33 offset:128\nds_write_b16_d16_hi v58, v33 offset:192")
    a("s_waitcnt lgkmcnt(0)")
    a(f"ds_read_b128 {vr(ZG,4)}, v59\nds_read_b128 {vr(ZG+4,4)}, v59 offset:128")
    DW = 24
    for rb in range(2):
        a(f"s_waitcnt lgkmcnt({1-rb})")
        for e in range(8):
            c = vr(DW+4*e, 4) if rb else "0"
            a(f"v_mfma_f32_16x16x32_bf16 {vr(DW+4*e,4)}, {vr(ZG+4*rb,4)}, {vr(Z[rb]+4*e,4)}, {c}")
    a("s_mov_b32 exec_lo, 0xff0000ff\ns_mov_b32 exec_hi, 0")
    for e in range(0, 8, 2):
        a(f"ds_write2_b32 v60, v{DW+4*e}, v{DW+4*e+4} offset0:{e} offset1:{e+1}")
    a("s_mov_b64 exec, -1")
    a("s_waitcnt lgkmcnt(0)")
    a("s_barrier")
    lnw = lab("nowp")
    a(f"s_cmp_lg_u32 s{HW}, 0\ns_cbranch_scc1 {lnw}")
    a(f"v_lshlrev_b32 v4, 4, v0\nv_add_u32 v5, {REDW}, v4")
    a("s_mov_b64 exec, 0xffff")
    for p in range(8):
        a(f"ds_read_b128 {vr(24+4*p,4)}, v5 offset:{256*p}")
    a(f"s_lshl_b32 s55, s54, 11\ns_lshl_b32 s56, s35, 8\ns_add_u32 s55, s55, s56\ns_add_u32 s55, s55, {WP}")
    for p in range(1, 8):
        a(f"s_waitcnt lgkmcnt({7-p})")
        a(f"v_pk_add_f32 v[24:25], v[24:25], {vr(24+4*p,2)}\nv_pk_add_f32 v[26:27], v[26:27], {vr(26+4*p,2)}")
    for i in range(4):
        a(f"v_min_u32 v{24+i}, -2, v{24+i}")
    a(f"buffer_store_dwordx4 v[24:27], v4, {sr(SWS,4)}, s55 offen sc1")
    a("s_mov_b64 exec, -1")
    a(f"{lnw}:")
    stamp(10)
    a("s_cmp_eq_u32 s35, 7\ns_cbranch_scc1 L_final")

    a(f"s_lshl_b32 s55, s34, 14\ns_add_u32 s55, s55, {WP}\ns_lshl_b32 s56, s{HW}, 9\ns_add_u32 s55, s55, s56")
    a("s_add_u32 s56, s55, 4096\ns_add_u32 s57, s55, 8192\ns_add_u32 s58, s55, 12288")
    a("v_lshlrev_b32 v4, 3, v0")
    lp = spin_head("h2", CNT)
    for kv in range(8):
        a(f"buffer_load_dwordx2 {vr(32+2*kv,2)}, v4, {sr(SWS,4)}, s{55+kv//2} offen offset:{(kv%2)*2048} sc1")
    a("s_waitcnt vmcnt(0)")
    sentinel_check(range(32, 48), 5, lp)
    stamp(11)
    for i in range(4):
        a(f"v_pk_add_f32 {vr(32+4*i,2)}, {vr(32+4*i,2)}, {vr(34+4*i,2)}")
    a("v_pk_add_f32 v[32:33], v[32:33], v[36:37]\nv_pk_add_f32 v[40:41], v[40:41], v[44:45]\nv_pk_add_f32 v[32:33], v[32:33], v[40:41]")
    rnd2(32, 33, 5)
    a(f"v_pk_mul_f32 v[32:33], v[32:33], {vr(GA,2)}")
    rnd2(32, 33, 5)
    a(f"v_pk_add_f32 v[32:33], v[32:33], {vr(XA,2)}")
    rnd2(32, 33, 5)
    a("v_add_f32 v34, v32, v33")

    def wave_sum(x, t):
        for c in ("row_ror:1", "row_ror:2", "row_ror:4", "row_ror:8"):
            dpp_add([x], c)
        xlane("v_add_f32", x, t, 16)
        xlane("v_add_f32", x, t, 32)
    wave_sum(34, 5)
    a(f"v_mul_f32 v36, {hexs(f2u(1/128))}, v34")
    a("v_sub_f32 v38, v32, v36\nv_sub_f32 v39, v33, v36\nv_mul_f32 v35, v38, v38\nv_fmac_f32 v35, v39, v39")
    wave_sum(35, 5)
    a(f"s_lshl_b32 s55, s{HW}, 3\ns_add_u32 s55, s55, {LNS}\nv_mov_b32 v5, s55\nv_mov_b32 v6, {LNS}")
    a("s_mov_b64 exec, 1")
    a("ds_write_b64 v5, v[34:35]")
    a("s_mov_b64 exec, -1")
    a("s_waitcnt lgkmcnt(0)")
    a("s_barrier")
    a("ds_read_b128 v[36:39], v6\nds_read_b128 v[40:43], v6 offset:16")
    a(f"s_lshl_b32 s55, s{HW}, 8\ns_add_u32 s55, s55, {H2L}\nv_lshl_add_u32 v5, v0, 2, s55")
    a("s_waitcnt lgkmcnt(0)")
    a("v_add_f32 v34, v36, v38\nv_add_f32 v44, v40, v42\nv_add_f32 v34, v34, v44")
    a(f"v_mul_f32 v34, {hexs(f2u(1/512))}, v34")
    a(f"s_mov_b32 s56, {hexs(f2u(1/128))}")
    for r in (36, 38, 40, 42):
        a(f"v_fma_f32 v{r}, v{r}, s56, -v34")
    a("v_mul_f32 v44, v36, v36\nv_fmac_f32 v44, v38, v38\nv_fmac_f32 v44, v40, v40\nv_fmac_f32 v44, v42, v42")
    a("v_add_f32 v35, v37, v39\nv_add_f32 v45, v41, v43\nv_add_f32 v35, v35, v45")
    a(f"v_fmac_f32 v35, {hexs(f2u(128.0))}, v44")
    a(f"v_mul_f32 v35, {hexs(f2u(1/512))}, v35")
    rnd2(34, 35, 44)
    a(f"v_add_f32 v35, {hexs(f2u(1e-5))}, v35")
    rnd1(35)
    a("v_sqrt_f32 v35, v35")
    rnd1(35)
    a("v_rcp_f32 v36, v35")
    a("v_sub_f32 v38, v32, v34\nv_sub_f32 v39, v33, v34")
    rnd2(38, 39, 44)
    div_refined(32, 38, 35, 36, 44)
    div_refined(33, 39, 35, 36, 45)
    rnd2(32, 33, 44)
    a(f"v_pk_mul_f32 v[32:33], v[32:33], {vr(CB1,2)}")
    rnd2(32, 33, 44)
    a(f"v_pk_add_f32 v[32:33], v[32:33], {vr(SBv,2)}")
    a("v_cvt_pk_bf16_f32 v32, v32, v33")
    a("ds_write_b32 v5, v32")
    a(f"s_and_b32 s55, s{HW}, 1\ns_lshl_b32 s55, s55, 9\ns_add_u32 s55, s55, {H2L}")
    a(f"v_lshrrev_b32 v6, 2, v{M_}\nv_lshlrev_b32 v6, 4, v6\nv_lshl_add_u32 v6, v{G_}, 6, v6\nv_add_u32 v6, s55, v6")
    a(f"s_lshl_b32 s55, s{HW}, 9\ns_add_u32 s55, s55, {REDG}")
    a(f"v_and_b32 v7, 3, v0\nv_lshlrev_b32 v7, 5, v7\nv_lshl_add_u32 v7, v{G_}, 7, v7\nv_add_u32 v7, s55, v7")
    a("s_waitcnt lgkmcnt(0)")
    a("s_barrier")
    a("ds_read_b128 v[56:59], v6\nds_read_b128 v[60:63], v6 offset:256")
    for rb in range(2):
        a(f"s_waitcnt lgkmcnt({1-rb})")
        for e in range(8):
            c = vr(DW+4*e, 4) if rb else "0"
            a(f"v_mfma_f32_16x16x32_bf16 {vr(DW+4*e,4)}, {vr(56+4*rb,4)}, {vr(Z[2+rb]+4*e,4)}, {c}")
    a(f"v_and_b32 v5, 31, v0\nv_lshrrev_b32 v6, 5, v0\nv_lshlrev_b32 v6, 10, v6\nv_lshl_add_u32 v6, v5, 2, v6\nv_add_u32 v6, {REDG}, v6")
    a("v_lshlrev_b32 v5, 1, v5\nv_add_u32 v5, s53, v5")
    a(f"v_lshlrev_b32 v8, 4, v{G_}\nv_add_u32 v8, s53, v8")
    a("s_mov_b32 exec_lo, 0x00f0000f\ns_mov_b32 exec_hi, 0xf0000f00")
    for e in range(0, 8, 2):
        a(f"ds_write2_b32 v7, v{DW+4*e}, v{DW+4*e+4} offset0:{e} offset1:{e+1}")
    a("s_mov_b64 exec, -1")
    a("s_waitcnt lgkmcnt(0)")
    a("s_barrier")
    for k in range(4):
        a(f"ds_read2_b32 {vr(24+2*k,2)}, v6 offset0:{64*k} offset1:{64*k+32}")
    a(f"s_mov_b32 s55, {hexs(f2u(0.044715))}")
    c2 = -2.0 * LOG2E * (2.0/3.141592653589793) ** 0.5
    a(f"s_mul_i32 s56, s34, 56\ns_add_u32 s56, s56, s59\ns_lshl_b32 s56, s56, 11\ns_lshl_b32 s57, s{HW}, 9\ns_add_u32 s56, s56, s57\ns_add_u32 s56, s56, {DP}")
    a(f"v_lshlrev_b32 v9, 4, v0")
    a("s_waitcnt lgkmcnt(0)")
    a("v_pk_add_f32 v[24:25], v[24:25], v[26:27]\nv_pk_add_f32 v[28:29], v[28:29], v[30:31]\nv_pk_add_f32 v[24:25], v[24:25], v[28:29]")
    a("v_add_f32 v24, v24, v25")
    rnd1(24)
    a("v_mov_b32 v25, v24\nv_permlane32_swap_b32 v24, v25")
    a("v_mul_f32 v26, v24, v24\nv_fma_f32 v26, v26, s55, 1.0\nv_mul_f32 v26, v26, v24")
    a(f"v_mul_f32 v26, {hexs(f2u(c2))}, v26\nv_exp_f32 v26, v26\nv_add_f32 v26, 1.0, v26\nv_rcp_f32 v26, v26\nv_mul_f32 v26, v26, v24")
    rnd1(26)
    a("v_mul_f32 v26, v26, v25\nv_cvt_pk_bf16_f32 v26, v26, v26")
    a("ds_write_b16 v5, v26")
    a("s_waitcnt lgkmcnt(0)")
    a("ds_read_b128 v[56:59], v8")
    a("s_waitcnt lgkmcnt(0)")
    for e in range(8):
        a(f"v_mfma_f32_16x16x32_bf16 {vr(DW+4*e,4)}, v[56:59], {vr(Z[4]+4*e,4)}, 0")
    for e in range(8):
        a(f"v_min_u32 v{56+e}, -2, v{DW+4*e}")
    a("s_mov_b64 exec, 0xffff")
    a(f"buffer_store_dwordx4 v[56:59], v9, {sr(SWS,4)}, s56 offen sc1")
    a(f"buffer_store_dwordx4 v[60:63], v9, {sr(SWS,4)}, s56 offen offset:256 sc1")
    a("s_branch L_fin")

    a("L_final:")
    a("v_lshrrev_b32 v4, 2, v0")
    a(f"v_lshlrev_b32 v5, 11, v4\nv_lshl_add_u32 v8, v7, 2, v5")
    a("v_mov_b32 v9, 0x7ffffff0\nv_cmp_gt_u32 vcc, 8, v4\nv_cndmask_b32 v8, v9, v8, vcc")
    a(f"s_lshl_b32 s55, s34, 14\ns_add_u32 s55, s55, {WP}")
    a(f"v_and_b32 v6, 3, v0\nv_lshl_add_u32 v10, v6, 4, v5\nv_cndmask_b32 v11, v9, v10, vcc")
    a(f"s_mul_i32 s56, s34, {56*2048}\ns_add_u32 s56, s56, {DP}\ns_lshr_b32 s57, s32, 1\ns_lshl_b32 s57, s57, 9\ns_add_u32 s56, s56, s57")
    a(f"s_and_b32 s57, s{HW}, 1\ns_lshl_b32 s57, s57, 8\ns_add_u32 s56, s56, s57\ns_lshl_b32 s57, s62, 4\ns_add_u32 s56, s56, s57")
    a("s_add_u32 s57, s56, 32768\ns_add_u32 s58, s56, 65536\ns_add_u32 s59, s56, 98304")
    srd(S2, 26, 4096)
    a("v_lshlrev_b32 v7, 1, v7\ns_lshl_b32 s60, s34, 10")

    def reduce16(xs, ts):
        dpp_add(xs, "row_ror:4")
        dpp_add(xs, "row_ror:8")
        xlane_multi("v_add_f32", xs, ts, 16)
        xlane_multi("v_add_f32", xs, ts, 32)
    lp = spin_head("fw", CNT)
    a(f"buffer_load_dwordx4 v[24:27], v8, {sr(SWS,4)}, s55 offen sc1")
    a("s_waitcnt vmcnt(0)")
    sentinel_check(range(24, 28), 5, lp)
    reduce16([24, 25, 26, 27], [28, 29, 30, 31])
    rnd2(24, 25, 5)
    rnd2(26, 27, 6)
    a("v_pk_mul_f32 v[24:25], v[24:25], v[20:21]\nv_pk_mul_f32 v[26:27], v[26:27], v[22:23]")
    rnd2(24, 25, 5)
    rnd2(26, 27, 6)
    a("v_pk_add_f32 v[16:17], v[16:17], v[24:25]\nv_pk_add_f32 v[18:19], v[18:19], v[26:27]")
    rnd2(16, 17, 5)
    rnd2(18, 19, 6)
    lp = spin_head("h3", CNT)
    for i in range(4):
        a(f"buffer_load_dwordx4 {vr(24+4*i,4)}, v{11 if i == 3 else 10}, {sr(SWS,4)}, s{56+i} offen sc1")
    a("s_waitcnt vmcnt(0)")
    sentinel_check(range(24, 40), 5, lp)
    stamp(11)
    for k in (0, 2):
        a(f"v_pk_add_f32 {vr(24+k,2)}, {vr(24+k,2)}, {vr(28+k,2)}\nv_pk_add_f32 {vr(32+k,2)}, {vr(32+k,2)}, {vr(36+k,2)}")
    for k in (0, 2):
        a(f"v_pk_add_f32 {vr(24+k,2)}, {vr(24+k,2)}, {vr(32+k,2)}")
    reduce16([24, 25, 26, 27], [28, 29, 30, 31])
    rnd2(24, 25, 5)
    rnd2(26, 27, 6)
    a(f"v_pk_mul_f32 v[24:25], v[24:25], {vr(GBv,2)}\nv_pk_mul_f32 v[26:27], v[26:27], {vr(GBv+2,2)}")
    rnd2(24, 25, 5)
    rnd2(26, 27, 6)
    a("v_pk_add_f32 v[24:25], v[24:25], v[16:17]\nv_pk_add_f32 v[26:27], v[26:27], v[18:19]")
    a("v_cvt_pk_bf16_f32 v24, v24, v25\nv_cvt_pk_bf16_f32 v25, v26, v27")
    a("s_mov_b64 exec, 0xf")
    a(f"buffer_store_dwordx2 v[24:25], v7, {sr(S2,4)}, s60 offen")
    lne = lab("noep")
    a(f"s_cmp_lg_u32 s2, 255\ns_cbranch_scc1 {lne}\ns_cmp_lg_u32 s{HW}, 0\ns_cbranch_scc1 {lne}")
    a(f"v_mov_b32 v4, s{T}\nv_mov_b32 v5, 0\ns_mov_b64 exec, 1")
    a(f"buffer_store_dword v4, v5, {sr(SWS,4)}, 0 offen offset:{EPOCH}")
    a(f"{lne}:")
    a("L_fin:")
    stamp(12)
    stamp_store(30)
    a("L_end:")
    a("s_endpgm")

    hdr = open("adaLN_cond__gqa_block_cached__glu_gated_geglu__decode.s.ref").read().split("\n")
    head = [l for l in hdr[:hdr.index(next(l for l in hdr if l.startswith("; @launch")))]]
    out = "\n".join(head) + "\n"
    out += f"; @launch grid=(256,1,1) block=(512,1,1) lds={LDS_END}\n"
    out += '.amdgcn_target "amdgcn-amd-amdhsa--gfx950"\n.text\n'
    out += f".globl {KN}\n.p2align 8\n.type {KN},@function\n"
    out += a.text()
    out += f""".section .rodata,"a"
.p2align 6
.amdhsa_kernel {KN}
  .amdhsa_next_free_vgpr 256
  .amdhsa_next_free_sgpr 102
  .amdhsa_accum_offset 256
  .amdhsa_group_segment_fixed_size 0
  .amdhsa_kernarg_size 112
  .amdhsa_user_sgpr_count 2
  .amdhsa_user_sgpr_kernarg_segment_ptr 1
  .amdhsa_system_sgpr_workgroup_id_x 1
  .amdhsa_float_denorm_mode_32 3
.end_amdhsa_kernel
"""
    return out


if __name__ == "__main__":
    import json
    kw = json.loads(sys.argv[2]) if len(sys.argv) > 2 else {}
    open(sys.argv[1], "w").write(gen(**kw))
```
